```python
import torch

def _softmax(x, axis=-1):
    return torch.softmax(x, dim=axis)
def _gelu(x):
    return torch.nn.functional.gelu(x, approximate="tanh")
def _silu(x):
    return torch.nn.functional.silu(x)
def _sigmoid(x):
    return torch.sigmoid(x)
def _layernorm(x, axis=-1, eps=1e-5):
    m = x.mean(dim=axis, keepdim=True)
    v = x.var(dim=axis, keepdim=True, unbiased=False)
    return (x - m) / torch.sqrt(v + eps)
def _scatter_add(tgt, idx, src, axis=0):
    return tgt.clone().index_add_(axis, idx, src)
def _segment_sum(src, seg, n):
    out = torch.zeros((n,) + src.shape[1:], dtype=src.dtype)
    return out.index_add_(0, seg, src)
def _pad(x, pw):
    flat = tuple(v for pair in reversed(pw) for v in pair)
    return torch.nn.functional.pad(x, flat)

kernel_name = 'concat_heads__mha_block_cached__mha_block_cached__near_ridge'

def setup_inputs():

    _w = (lambda a: (lambda t: t.to(torch.bfloat16) if t.is_floating_point() else t)(torch.as_tensor(a)))
    def _A_setup():
        B, Sq, D = 8, 144, 640
        H, Sk, Dh = 32, 512, 128
        return {
            "x": _w((lambda *s: torch.randn(*s, dtype=torch.bfloat16) * 0.8)(B, Sq, D)),
            "k_cache": _w((lambda *s: torch.randn(*s, dtype=torch.bfloat16) * 0.8)(B, H, Sk, Dh)),
            "v_cache": _w((lambda *s: torch.randn(*s, dtype=torch.bfloat16) * 0.05)(B, H, Sk, Dh)),
            "wq": _w((lambda *s: torch.randn(*s, dtype=torch.bfloat16) * 0.8)(D, H * Dh) * (D ** -0.5)),
            "wo": _w((lambda *s: torch.randn(*s, dtype=torch.bfloat16) * 0.05)(H * Dh, D) * ((H * Dh) ** -0.5)),
        }
    _A_in = _A_setup()

    def _B_setup():
        B, Sq, D = 8, 144, 640
        H, Sk, Dh = 32, 512, 128
        return {
            "x": _w((lambda *s: torch.randn(*s, dtype=torch.bfloat16) * 0.8)(B, Sq, D)),
            "k_cache": _w((lambda *s: torch.randn(*s, dtype=torch.bfloat16) * 0.8)(B, H, Sk, Dh)),
            "v_cache": _w((lambda *s: torch.randn(*s, dtype=torch.bfloat16) * 0.05)(B, H, Sk, Dh)),
            "wq": _w((lambda *s: torch.randn(*s, dtype=torch.bfloat16) * 0.8)(D, H * Dh) * (D ** -0.5)),
            "wo": _w((lambda *s: torch.randn(*s, dtype=torch.bfloat16) * 0.05)(H * Dh, D) * ((H * Dh) ** -0.5)),
        }
    _B_in = _B_setup()

    return {
        "A_x": _A_in["x"],
        "A_k_cache": _A_in["k_cache"],
        "A_v_cache": _A_in["v_cache"],
        "A_wq": _A_in["wq"],
        "A_wo": _A_in["wo"],
        "B_x": _B_in["x"],
        "B_k_cache": _B_in["k_cache"],
        "B_v_cache": _B_in["v_cache"],
        "B_wq": _B_in["wq"],
        "B_wo": _B_in["wo"],
    }

def reference(A_x, A_k_cache, A_v_cache, A_wq, A_wo, B_x, B_k_cache, B_v_cache, B_wq, B_wo):
    def _A_ref(x, k_cache, v_cache, wq, wo):
        B, Sq, D = x.shape
        H, Dh = 32, 128
        q = (lambda x, *d: x.permute(*d))((x @ wq).reshape(B, Sq, H, Dh), 0, 2, 1, 3)
        scores = torch.einsum("bhqd,bhkd->bhqk", q, k_cache) * (Dh ** -0.5)
        p = _softmax(scores, axis=-1)
        o = torch.einsum("bhqk,bhkd->bhqd", p, v_cache)
        return (lambda x, *d: x.permute(*d))(o, 0, 2, 1, 3).reshape(B, Sq, H * Dh) @ wo

    def _B_ref(x, k_cache, v_cache, wq, wo):
        B, Sq, D = x.shape
        H, Dh = 32, 128
        q = (lambda x, *d: x.permute(*d))((x @ wq).reshape(B, Sq, H, Dh), 0, 2, 1, 3)
        scores = torch.einsum("bhqd,bhkd->bhqk", q, k_cache) * (Dh ** -0.5)
        p = _softmax(scores, axis=-1)
        o = torch.einsum("bhqk,bhkd->bhqd", p, v_cache)
        return (lambda x, *d: x.permute(*d))(o, 0, 2, 1, 3).reshape(B, Sq, H * Dh) @ wo

    a = _A_ref(A_x, A_k_cache, A_v_cache, A_wq, A_wo)
    b = _B_ref(B_x, B_k_cache, B_v_cache, B_wq, B_wo)
    return torch.concatenate([a, b], axis=-1)
```

```python
KNAME = "concat_heads__mha_block_cached__mha_block_cached__near_ridge"

class Asm:
    def __init__(self):
        self.lines = []
        self.nlab = 0
    def __call__(self, s):
        for l in s.split("\n"):
            self.lines.append(l)
    def label(self, name):
        self.lines.append(name + ":")
    def newlabel(self, base="L"):
        self.nlab += 1
        return "%s_%d" % (base, self.nlab)
    def text(self):
        return "\n".join(self.lines) + "\n"

def header(launches):
    s = []
    for k, g, b, lds in launches:
        s.append("; @launch kernel=%s grid=(%d,%d,%d) block=(%d,%d,%d) lds=%d" % (k, g[0], g[1], g[2], b[0], b[1], b[2], lds))
    s.append('.amdgcn_target "amdgcn-amd-amdhsa--gfx950"')
    s.append(".text")
    return "\n".join(s) + "\n"

def kernel_begin(name):
    return ".globl %s\n.p2align 8\n.type %s,@function\n%s:\n" % (name, name, name)

def kernel_desc(name, vgpr, sgpr, accum):
    return (""".section .rodata,"a"
.p2align 6
.amdhsa_kernel %s
  .amdhsa_next_free_vgpr %d
  .amdhsa_next_free_sgpr %d
  .amdhsa_accum_offset %d
  .amdhsa_group_segment_fixed_size 0
  .amdhsa_kernarg_size 104
  .amdhsa_user_sgpr_count 2
  .amdhsa_user_sgpr_kernarg_segment_ptr 1
  .amdhsa_system_sgpr_workgroup_id_x 1
.end_amdhsa_kernel
.text
""" % (name, vgpr, sgpr, accum))
```

```python
from asmgen import *

OS_BLK = 8 * 9 * 128 * 1024
QT_BYTES = 128 * 1024
ABLK = 1056
ASLOT = 4 * ABLK

def gen_k2(a, name, NB=4, ld_o="", ld_w="", rot=0, stamps=False, skip="", P=32):
    a(kernel_begin(name))
    a("s_cmp_ge_u32 s2, 240")
    a("s_cbranch_scc1 K2_end")
    if stamps:
        a("s_memrealtime s[50:51]")
        a("s_memtime s[52:53]")
        a("s_load_dwordx2 s[60:61], s[0:1], 88")
    a("s_load_dwordx2 s[4:5], s[0:1], 32")
    a("s_load_dwordx2 s[6:7], s[0:1], 72")
    a("s_load_dwordx2 s[8:9], s[0:1], 80")
    a("s_load_dwordx2 s[10:11], s[0:1], 96")
    a("v_lshrrev_b32 v1, 6, v0")
    a("v_and_b32 v0, 63, v0")
    a("v_readfirstlane_b32 s20, v1")
    a("s_and_b32 s21, s2, 7")
    a("s_lshr_b32 s22, s2, 3")
    a("s_lshr_b32 s23, s21, 2")
    a("s_mul_i32 s24, s22, 52")
    a("s_lshr_b32 s24, s24, 8")
    a("s_mul_i32 s25, s24, 5")
    a("s_sub_u32 s25, s22, s25")
    a("s_and_b32 s26, s21, 1")
    a("s_mul_i32 s26, s26, 5")
    a("s_add_u32 s25, s25, s26")
    a("s_lshl_b32 s25, s25, 7")
    a("s_lshr_b32 s26, s21, 1")
    a("s_and_b32 s26, s26, 1")
    a("s_mul_i32 s26, s26, 6")
    a("s_add_u32 s27, s24, s26")
    a("v_lshrrev_b32 v2, 3, v0")
    a("v_mul_u32_u24 v2, 5120, v2")
    a("v_and_b32 v3, 7, v0")
    a("v_lshl_add_u32 v10, v3, 4, v2")
    a("v_lshlrev_b32 v15, 4, v0")
    a("v_lshrrev_b32 v2, 2, v0")
    a("v_and_b32 v2, 3, v2")
    a("v_mul_u32_u24 v2, %d, v2" % ABLK)
    a("v_lshrrev_b32 v3, 4, v0")
    a("v_lshl_add_u32 v2, v3, 7, v2")
    a("v_and_b32 v3, 3, v0")
    a("v_lshl_add_u32 v2, v3, 3, v2")
    a("s_mul_i32 s29, s20, %d" % (NB * ASLOT))
    a("v_add_u32 v19, s29, v2")
    a("s_waitcnt lgkmcnt(0)")
    a("s_cmp_eq_u32 s23, 0")
    a("s_cselect_b32 s12, s4, s6")
    a("s_cselect_b32 s13, s5, s7")
    a("s_add_u32 s12, s12, s25")
    a("s_addc_u32 s13, s13, 0")
    a("s_sub_u32 s14, %d, s25" % (4096 * 1280))
    a("s_mov_b32 s15, 0x20000")
    a("s_mul_i32 s30, s23, %d" % OS_BLK)
    a("s_mul_i32 s31, s27, %d" % (6 * QT_BYTES))
    a("s_add_u32 s30, s30, s31")
    a("s_add_u32 s16, s10, s30")
    a("s_addc_u32 s17, s11, 0")
    a("s_mov_b32 s18, %d" % (6 * QT_BYTES))
    a("s_mov_b32 s19, 0x20000")
    a("s_mul_i32 s32, s20, %d" % (1024 * 1280))
    a("s_lshl_b32 s33, s20, 15")
    for t in range(1, 6):
        a("s_add_u32 s%d, s33, %d" % (33 + t, t * QT_BYTES))
    BV = 20
    AV = BV + NB * 24
    a("s_mul_i32 s41, s24, 5")
    a("s_sub_u32 s41, s22, s41")
    a("s_add_u32 s41, s41, s24")
    a("s_cmp_ge_u32 s41, 6")
    a("s_cselect_b32 s42, 6, 0")
    a("s_sub_u32 s41, s41, s42")
    a("s_mul_i32 s41, s41, %d" % rot)
    a("s_and_b32 s41, s41, %d" % (P - 1))
    def startstep(s):
        a("s_add_u32 s45, s41, %d" % (s % P))
        a("s_and_b32 s45, s45, %d" % (P - 1))
        a("s_add_u32 s45, s45, %d" % ((s // P) * P))
        a("s_lshl_b32 s42, s45, 10")
        a("s_mul_i32 s43, s45, 40960")
        a("s_add_u32 s43, s43, s32")
    def issueW(s, i):
        slot = s % NB
        if i == 0:
            startstep(s)
        a("s_add_u32 m0, s29, %d" % (slot * ASLOT + i * ABLK))
        a("s_add_u32 s40, s43, %d" % (i * 1280))
        a("buffer_load_dwordx4 v10, s[12:15], s40 offen %s lds" % ld_w)
    def issueB(s, t):
        slot = s % NB
        r = BV + slot * 24 + t * 4
        a("s_add_u32 s44, s%d, s42" % (33 + t))
        a("buffer_load_dwordx4 v[%d:%d], v15, s[16:19], s44 offen %s" % (r, r + 3, ld_o))
    def readA(s):
        slot = s % NB
        base = AV + (s & 1) * 16
        for t in range(4):
            a("ds_read_b64_tr_b16 v[%d:%d], v19 offset:%d" % (base + 4 * t, base + 4 * t + 1, slot * ASLOT + 32 * t))
            a("ds_read_b64_tr_b16 v[%d:%d], v19 offset:%d" % (base + 4 * t + 2, base + 4 * t + 3, slot * ASLOT + 32 * t + 512))
    NS = 32
    for s in range(NB):
        for i in range(4):
            issueW(s, i)
        for t in range(6):
            issueB(s, t)
    a("s_waitcnt vmcnt(%d)" % (10 * (NB - 1)))
    if stamps:
        a("s_memtime s[54:55]")
        a("s_waitcnt lgkmcnt(0)")
    readA(0)
    for s in range(NS):
        if s + 1 < NS:
            later = min(s + NB - 1, NS - 1) - (s + 1)
            a("s_waitcnt vmcnt(%d) lgkmcnt(0)" % (10 * later))
            readA(s + 1)
        else:
            a("s_waitcnt lgkmcnt(0)")
        slot = s % NB
        ab = AV + (s & 1) * 16
        nxt = s + NB < NS
        for tq in range(6):
            for tn in range(4):
                acc = (tn * 6 + tq) * 4
                c = "0" if s == 0 else "a[%d:%d]" % (acc, acc + 3)
                bb = BV + slot * 24 + tq * 4
                a("v_mfma_f32_16x16x32_bf16 a[%d:%d], v[%d:%d], v[%d:%d], %s" % (acc, acc + 3, ab + 4 * tn, ab + 4 * tn + 3, bb, bb + 3, c))
                if nxt and tn == 1 and tq < 4:
                    issueW(s + NB, tq)
            if nxt:
                issueB(s + NB, tq)
    if stamps:
        a("s_memtime s[56:57]")
        a("s_waitcnt lgkmcnt(0)")
    a("s_nop 15")
    a("s_barrier")
    a("s_mul_i32 s29, s20, 24576")
    a("v_lshl_add_u32 v2, v0, 4, s29")
    for t in range(24):
        a("ds_write_b128 v2, a[%d:%d] offset:%d" % (4 * t, 4 * t + 3, t * 1024))
    a("s_waitcnt lgkmcnt(0)")
    a("s_barrier")
    a("s_mul_i32 s30, s27, %d" % (96 * 2560))
    a("s_mul_i32 s31, s23, 1280")
    a("s_add_u32 s30, s30, s31")
    a("s_add_u32 s30, s30, s25")
    a("s_add_u32 s12, s8, s30")
    a("s_addc_u32 s13, s9, 0")
    a("s_sub_u32 s14, %d, s30" % (8 * 144 * 2560))
    a("s_mov_b32 s15, 0x20000")
    a("s_lshl_b32 s31, s20, 6")
    a("v_add_u32 v1, s31, v0")
    for it in range(3):
        a("v_add_u32 v2, %d, v1" % (256 * it))
        a("v_lshrrev_b32 v3, 3, v2")
        a("v_and_b32 v4, 7, v2")
        a("v_mul_u32_u24 v5, 2560, v3")
        a("v_lshl_add_u32 v5, v4, 4, v5")
        a("v_lshrrev_b32 v6, 4, v3")
        a("v_and_b32 v7, 15, v3")
        a("v_lshrrev_b32 v8, 1, v4")
        a("v_mul_u32_u24 v8, 6, v8")
        a("v_add_u32 v8, v8, v6")
        a("v_and_b32 v9, 1, v4")
        a("v_lshlrev_b32 v9, 5, v9")
        a("v_add_u32 v9, v9, v7")
        a("v_lshlrev_b32 v9, 4, v9")
        a("v_lshl_add_u32 v9, v8, 10, v9")
        a("v_add_u32 v8, 49152, v9")
        for w in range(4):
            va = 9 if w < 2 else 8
            a("ds_read_b128 v[%d:%d], v%d offset:%d" % (20 + 8 * w, 23 + 8 * w, va, (w & 1) * 24576))
            a("ds_read_b128 v[%d:%d], v%d offset:%d" % (24 + 8 * w, 27 + 8 * w, va, (w & 1) * 24576 + 256))
        a("s_waitcnt lgkmcnt(0)")
        for e in range(8):
            a("v_add_f32 v%d, v%d, v%d" % (20 + e, 20 + e, 28 + e))
            a("v_add_f32 v%d, v%d, v%d" % (36 + e, 36 + e, 44 + e))
        for e in range(8):
            a("v_add_f32 v%d, v%d, v%d" % (20 + e, 20 + e, 36 + e))
        for e in range(4):
            a("v_cvt_pk_bf16_f32 v%d, v%d, v%d" % (60 + 4 * it + e, 20 + 2 * e, 21 + 2 * e))
        a("buffer_store_dwordx4 v[%d:%d], v5, s[12:15], 0 offen" % (60 + 4 * it, 63 + 4 * it))
    if stamps:
        a("s_waitcnt vmcnt(0)")
        a("s_memtime s[58:59]")
        a("s_memrealtime s[62:63]")
        a("s_waitcnt lgkmcnt(0)")
        a("s_sub_u32 s54, s54, s52")
        a("s_sub_u32 s56, s56, s52")
        a("s_sub_u32 s58, s58, s52")
        a("v_mov_b32 v4, s50")
        a("v_mov_b32 v5, s62")
        a("v_mov_b32 v6, s54")
        a("v_mov_b32 v7, s56")
        a("v_mov_b32 v8, s58")
        a("v_mov_b32 v9, s20")
        a("s_lshl_b32 s6, s2, 2")
        a("s_add_u32 s6, s6, s20")
        a("s_lshl_b32 s6, s6, 5")
        a("v_mov_b32 v3, s6")
        a("s_mov_b64 exec, 1")
        a("global_store_dwordx4 v3, v[4:7], s[60:61]")
        a("global_store_dwordx2 v3, v[8:9], s[60:61] offset:16")
    a.label("K2_end")
    a("s_endpgm")
    nv = AV + 32
    acc_off = (nv + 3) // 4 * 4
    a(kernel_desc(name, acc_off + 96, 72, acc_off))
    return 98304

if __name__ == "__main__":
    import sys
    a = Asm()
    NB = int(sys.argv[2]) if len(sys.argv) > 2 else 4
    a(header([("k2_kernel", (240,1,1), (256,1,1), 98304)]))
    gen_k2(a, "k2_kernel", NB=NB, stamps=int(sys.argv[3]), rot=int(sys.argv[4]), ld_w=sys.argv[5].replace("-",""), ld_o=sys.argv[6].replace("-",""), P=int(sys.argv[7]))
    open(sys.argv[1], "w").write(a.text())
```

```python
from asmgen import *
import struct, math

OS_BLK = 8 * 9 * 128 * 1024
QT_BYTES = 128 * 1024
WBLK = 1088; WPOS = 8 * WBLK
KBLK = 1088; VBLK = 1056
SLOT = 2 * WPOS
LDS_TOTAL = 9 * WPOS
NCH = 20
XD = 8
TTHR = 8.0

def f2u(x):
    return struct.unpack("<I", struct.pack("<f", x))[0]

class VQ:
    def __init__(self):
        self.q = []
    def issue(self, tag):
        self.q.append(tag)
    def wait_n(self, tags):
        last = -1
        for i, t in enumerate(self.q):
            if t in tags:
                last = i
        assert last >= 0, tags
        n = len(self.q) - 1 - last
        assert n <= 63
        return n

def gen_wave(a, NT, opt):
    L = "W%d_" % NT
    ACC, QF, S, P, NEGM, FR, ONES = 20, 128, 176, 200, 212, 224, 16
    XR = 128
    acc = lambda t, n: ACC + (t * NT + n) * 4
    qf = lambda n, j: QF + (n * 4 + j) * 4
    sreg = lambda u, n: S + (u * NT + n) * 4
    preg = lambda n: P + n * 4
    negm = lambda n: NEGM + n * 4
    xr = lambda c, n: XR + ((c % XD) * NT + n) * 4
    R4 = lambda r: "v[%d:%d]" % (r, r + 3)
    R2 = lambda r: "v[%d:%d]" % (r, r + 1)
    vq = VQ()
    ntkv = opt.get("kv", "nt")
    ldw = opt.get("wq", "")
    ldx = opt.get("x", "")
    sto = opt.get("o", "sc1")
    def issue_w(c):
        pos = (c + 7) % 9
        for i in range(2):
            a("s_add_u32 m0, s26, %d" % (pos * WPOS + i * WBLK))
            a("s_add_u32 s36, s25, %d" % ((32 * c + i) * 8192))
            a("buffer_load_dwordx4 v14, s[8:11], s36 offen %s lds" % ldw)
            vq.issue(("w", c))
        for n in range(NT):
            a("buffer_load_dwordx4 %s, v15, s[4:7], s%d offen offset:%d %s" % (R4(xr(c, n)), 30 + n, 64 * c, ldx))
            vq.issue(("w", c))
    def issue_k(i):
        slot = (2 * i) % 4
        for b in range(4):
            a("s_add_u32 m0, s27, %d" % (slot * SLOT + b * KBLK))
            a("s_add_u32 s36, s29, %d" % (i * 16384 + b * 1024))
            a("buffer_load_dwordx4 v12, s[12:15], s36 offen %s lds" % ntkv)
            vq.issue(("k", i))
    def issue_v(i):
        slot = (2 * i + 1) % 4
        for b in range(4):
            a("s_add_u32 m0, s28, %d" % (slot * SLOT + b * VBLK))
            a("s_add_u32 s36, s33, %d" % (i * 16384 + b * 256))
            a("buffer_load_dwordx4 v13, s[16:19], s36 offen %s lds" % ntkv)
            vq.issue(("v", i))
    for c in range(XD):
        issue_w(c)
    for c in range(NCH):
        a("s_waitcnt vmcnt(%d)" % vq.wait_n([("w", c)]))
        a("s_barrier")
        if c == 0 and opt.get("stamps"):
            a("s_memtime s[68:69]")
            a("s_waitcnt lgkmcnt(0)")
            a("s_sub_u32 s68, s68, s66")
        pos = (c + 7) % 9
        for half in range(2):
            for tt in range(4):
                t = half * 4 + tt
                j, p = t >> 1, t & 1
                off = pos * WPOS + 64 * j + 8 * p
                r = FR + half * 16 + tt * 4
                va = 16
                if off >= 32768:
                    va, off = 17, off - 32768
                a("ds_read_b64_tr_b16 %s, v%d offset:%d" % (R2(r), va, off))
                a("ds_read_b64_tr_b16 %s, v%d offset:%d" % (R2(r + 2), va, off + 256))
        for half in range(2):
            a("s_waitcnt lgkmcnt(%d)" % (8 if half == 0 else 0))
            for tt in range(4):
                t = half * 4 + tt
                for n in range(NT):
                    cc = "0" if c == 0 else R4(acc(t, n))
                    a("v_mfma_f32_16x16x32_bf16 %s, %s, %s, %s" % (R4(acc(t, n)), R4(FR + half * 16 + tt * 4), R4(xr(c, n)), cc))
        if c + XD < NCH:
            issue_w(c + XD)
        if c == 13: issue_k(0)
        if c == 15: issue_v(0)
        if c == 17: issue_k(1)
        if c == 19: issue_v(1)
    def stamp(reg):
        if opt.get("stamps"):
            a("s_memtime s[%d:%d]" % (reg, reg + 1))
            a("s_waitcnt lgkmcnt(0)")
            a("s_sub_u32 s%d, s%d, s66" % (reg, reg))
    stamp(70)
    a("s_nop 15")
    for n in range(NT):
        for j in range(4):
            for p in range(2):
                r = acc(2 * j + p, n)
                for e in range(4):
                    a("v_mul_f32 v%d, s34, v%d" % (r + e, r + e))
            for p in range(2):
                r = acc(2 * j + p, n)
                a("v_cvt_pk_bf16_f32 v%d, v%d, v%d" % (qf(n, j) + 2 * p, r, r + 1))
                a("v_cvt_pk_bf16_f32 v%d, v%d, v%d" % (qf(n, j) + 2 * p + 1, r + 2, r + 3))
    for e in range(4):
        a("v_mov_b32 v%d, 0x3f803f80" % (ONES + e))
    rare = []
    def read_k(i, sg, u, half):
        slot = (2 * i) % 4
        for j in range(4):
            a("ds_read_b128 %s, v10 offset:%d" % (R4(FR + half * 16 + j * 4), slot * SLOT + (2 * sg + u) * 4 * KBLK + 64 * j))
    def read_v(i, sg, half):
        slot = (2 * i + 1) % 4
        for tt in range(4):
            t = half * 4 + tt
            off = slot * SLOT + sg * 8 * VBLK + 32 * t
            r = FR + half * 16 + tt * 4
            a("ds_read_b64_tr_b16 %s, v11 offset:%d" % (R2(r), off))
            a("ds_read_b64_tr_b16 %s, v11 offset:%d" % (R2(r + 2), off + 512))
    def s_mfma(u, half, first):
        for n in range(NT):
            for j in range(4):
                if j == 0:
                    cc = "0" if first else R4(negm(n))
                else:
                    cc = R4(sreg(u, n))
                a("v_mfma_f32_16x16x32_bf16 %s, %s, %s, %s" % (R4(sreg(u, n)), R4(FR + half * 16 + j * 4), R4(qf(n, j)), cc))
    def xlane_max(r, t1):
        a("v_mov_b32 v%d, v%d" % (t1, r))
        a("s_nop 1")
        a("v_permlane32_swap_b32 v%d, v%d" % (r, t1))
        a("s_nop 1")
        a("v_max_f32 v%d, v%d, v%d" % (r, r, t1))
        a("v_mov_b32 v%d, v%d" % (t1, r))
        a("s_nop 1")
        a("v_permlane16_swap_b32 v%d, v%d" % (r, t1))
        a("s_nop 1")
        a("v_max_f32 v%d, v%d, v%d" % (r, r, t1))
    def tile_max(n, dst):
        vals = [sreg(0, n) + e for e in range(4)] + [sreg(1, n) + e for e in range(4)]
        a("v_max3_f32 v%d, v%d, v%d, v%d" % (dst, vals[0], vals[1], vals[2]))
        a("v_max3_f32 v%d, v%d, v%d, v%d" % (dst, dst, vals[3], vals[4]))
        a("v_max3_f32 v%d, v%d, v%d, v%d" % (dst, dst, vals[5], vals[6]))
        a("v_max_f32 v%d, v%d, v%d" % (dst, dst, vals[7]))
    def adjust(first):
        for n in range(NT):
            tile_max(n, 2)
            xlane_max(2, 3)
            if not first:
                a("v_max_f32 v2, 0, v2")
            for u in range(2):
                for e in range(4):
                    a("v_sub_f32 v%d, v%d, v2" % (sreg(u, n) + e, sreg(u, n) + e))
            if first:
                for e in range(4):
                    a("v_sub_f32 v%d, 0, v2" % (negm(n) + e))
            else:
                for e in range(4):
                    a("v_sub_f32 v%d, v%d, v2" % (negm(n) + e, negm(n) + e))
                a("v_exp_f32 v3, -v2")
                a("s_nop 0")
                for t in range(9):
                    for e in range(4):
                        a("v_mul_f32 v%d, v%d, v3" % (acc(t, n) + e, acc(t, n) + e))
    NSS = 8
    for i in range(NSS):
        a("s_waitcnt vmcnt(%d)" % vq.wait_n([("k", i), ("v", i)]))
        a("s_barrier")
        if i == 0: stamp(72)
        if i == 1: stamp(74)
        if i >= 1 and i + 1 < NSS:
            issue_k(i + 1)
            issue_v(i + 1)
        for sg in range(2):
            first = (i == 0 and sg == 0)
            if sg == 0:
                read_k(i, 0, 0, 0)
                read_k(i, 0, 1, 1)
            a("s_waitcnt lgkmcnt(4)")
            s_mfma(0, 0, first)
            a("s_waitcnt lgkmcnt(0)")
            read_v(i, sg, 0)
            s_mfma(1, 1, first)
            read_v(i, sg, 1)
            a("s_nop 7")
            if first:
                adjust(True)
            else:
                vals = [sreg(u, n) + e for n in range(NT) for u in range(2) for e in range(4)]
                a("v_max3_f32 v2, v%d, v%d, v%d" % (vals[0], vals[1], vals[2]))
                k = 3
                while k + 1 < len(vals):
                    a("v_max3_f32 v2, v2, v%d, v%d" % (vals[k], vals[k + 1]))
                    k += 2
                if k < len(vals):
                    a("v_max_f32 v2, v2, v%d" % vals[k])
                a("v_cmp_lt_f32 vcc, s35, v2")
                lab = "%sR%d_%d" % (L, i, sg)
                a("s_cbranch_vccnz %s" % lab)
                a.label(lab + "_back")
                rare.append(lab)
            for n in range(NT):
                for u in range(2):
                    for e in range(4):
                        a("v_exp_f32 v%d, v%d" % (2 + u * 4 + e, sreg(u, n) + e))
                for u in range(2):
                    a("v_cvt_pk_bf16_f32 v%d, v%d, v%d" % (preg(n) + 2 * u, 2 + u * 4, 3 + u * 4))
                    a("v_cvt_pk_bf16_f32 v%d, v%d, v%d" % (preg(n) + 2 * u + 1, 4 + u * 4, 5 + u * 4))
            a("s_waitcnt lgkmcnt(8)")
            a("s_nop 0")
            for half in range(2):
                for tt in range(4):
                    t = half * 4 + tt
                    for n in range(NT):
                        cc = "0" if first else R4(acc(t, n))
                        a("v_mfma_f32_16x16x32_bf16 %s, %s, %s, %s" % (R4(acc(t, n)), R4(FR + half * 16 + tt * 4), R4(preg(n)), cc))
                if half == 0:
                    a("s_waitcnt lgkmcnt(0)")
                    if sg == 0:
                        read_k(i, 1, 0, 0)
                else:
                    if sg == 0:
                        read_k(i, 1, 1, 1)
            for n in range(NT):
                cc = "0" if first else R4(acc(8, n))
                a("v_mfma_f32_16x16x32_bf16 %s, %s, %s, %s" % (R4(acc(8, n)), R4(ONES), R4(preg(n)), cc))
    stamp(76)
    a("s_nop 15")
    a("v_lshlrev_b32 v10, 4, v0")
    for n in range(NT):
        a("v_rcp_f32 v2, v%d" % acc(8, n))
        a("s_nop 0")
        for j in range(4):
            for p in range(2):
                r = acc(2 * j + p, n)
                for e in range(4):
                    a("v_mul_f32 v%d, v%d, v2" % (r + e, r + e))
            d = S + ((n * 4 + j) % 6) * 4
            for p in range(2):
                r = acc(2 * j + p, n)
                a("v_cvt_pk_bf16_f32 v%d, v%d, v%d" % (d + 2 * p, r, r + 1))
                a("v_cvt_pk_bf16_f32 v%d, v%d, v%d" % (d + 2 * p + 1, r + 2, r + 3))
            a("s_add_u32 s36, s37, %d" % (n * QT_BYTES + j * 1024))
            a("buffer_store_dwordx4 %s, v10, s[20:23], s36 offen %s" % (R4(d), sto))
            a("s_nop 1")
    if opt.get("stamps"):
        a("s_waitcnt vmcnt(0)")
        stamp(78)
        a("s_memrealtime s[80:81]")
        a("s_waitcnt lgkmcnt(0)")
        a("v_mov_b32 v20, s64")
        a("v_mov_b32 v21, s80")
        a("v_mov_b32 v22, s68")
        a("v_mov_b32 v23, s70")
        a("v_mov_b32 v24, s72")
        a("v_mov_b32 v25, s74")
        a("v_mov_b32 v26, s76")
        a("v_mov_b32 v27, s78")
        a("s_lshl_b32 s36, s2, 2")
        a("s_add_u32 s36, s36, s24")
        a("s_lshl_b32 s36, s36, 5")
        a("s_add_u32 s36, s36, 0x4000000")
        a("v_mov_b32 v3, s36")
        a("s_mov_b64 exec, 1")
        a("global_store_dwordx4 v3, v[20:23], s[56:57]")
        a("global_store_dwordx4 v3, v[24:27], s[56:57] offset:16")
    a("s_endpgm")
    for lab in rare:
        a.label(lab)
        a("s_nop 15")
        adjust(False)
        a("s_nop 1")
        a("s_branch %s_back" % lab)

def gen_k1(a, name, opt={}):
    a(kernel_begin(name))
    a("s_cmp_ge_u32 s2, 512")
    a("s_cbranch_scc1 K1_end")
    if opt.get("stamps"):
        a("s_memrealtime s[64:65]")
        a("s_memtime s[66:67]")
    a("s_load_dwordx4 s[40:43], s[0:1], 0")
    a("s_load_dwordx4 s[44:47], s[0:1], 16")
    a("s_load_dwordx4 s[48:51], s[0:1], 40")
    a("s_load_dwordx4 s[52:55], s[0:1], 56")
    a("s_load_dwordx2 s[56:57], s[0:1], 96")
    a("v_lshrrev_b32 v1, 6, v0")
    a("v_and_b32 v0, 63, v0")
    a("v_readfirstlane_b32 s24, v1")
    a("s_and_b32 s58, s2, 7")
    a("s_lshr_b32 s59, s2, 3")
    a("s_lshr_b32 s60, s58, 2")
    a("s_and_b32 s61, s58, 3")
    a("s_lshl_b32 s61, s61, 3")
    a("s_and_b32 s62, s59, 7")
    a("s_add_u32 s61, s61, s62")
    a("s_lshr_b32 s62, s59, 3")
    a("v_lshrrev_b32 v2, 4, v0")
    a("v_and_b32 v3, 1, v2")
    a("v_lshlrev_b32 v3, 15, v3")
    a("v_lshrrev_b32 v4, 5, v0")
    a("v_lshlrev_b32 v4, 17, v4")
    a("v_and_b32 v5, 15, v0")
    a("v_lshlrev_b32 v6, 4, v5")
    a("v_add3_u32 v14, v3, v4, v6")
    a("v_mul_u32_u24 v15, 1280, v5")
    a("v_lshl_add_u32 v15, v2, 4, v15")
    a("v_lshrrev_b32 v7, 2, v0")
    a("v_and_b32 v7, 3, v7")
    a("v_and_b32 v8, 1, v2")
    a("v_lshl_add_u32 v9, v8, 2, v7")
    a("v_mul_u32_u24 v16, %d, v9" % WBLK)
    a("v_lshl_add_u32 v16, v8, 3, v16")
    a("v_lshrrev_b32 v3, 1, v2")
    a("v_lshl_add_u32 v16, v3, 9, v16")
    a("v_and_b32 v4, 3, v0")
    a("v_lshl_add_u32 v16, v4, 4, v16")
    a("v_mul_u32_u24 v11, %d, v9" % VBLK)
    a("v_lshl_add_u32 v11, v3, 8, v11")
    a("v_lshl_add_u32 v11, v4, 3, v11")
    a("v_lshrrev_b32 v3, 2, v5")
    a("v_mul_u32_u24 v10, %d, v3" % KBLK)
    a("v_and_b32 v3, 3, v5")
    a("v_lshl_add_u32 v10, v3, 8, v10")
    a("v_xor_b32 v3, v3, v2")
    a("v_lshl_add_u32 v10, v3, 4, v10")
    a("v_xor_b32 v3, v5, v2")
    a("v_lshlrev_b32 v3, 4, v3")
    a("v_lshl_add_u32 v12, v2, 8, v3")
    a("v_lshl_add_u32 v13, v2, 11, v6")
    a("v_add_u32 v17, 32768, v16")
    a("s_mov_b32 s34, 0x%08x" % f2u(math.log2(math.e) / math.sqrt(128.0)))
    a("s_mov_b32 s35, 0x%08x" % f2u(TTHR))
    a("s_and_b32 s36, s24, 1")
    a("s_lshl_b32 s36, s36, 1")
    a("s_lshr_b32 s37, s24, 1")
    a("s_lshl_b32 s25, s37, 3")
    a("s_add_u32 s25, s25, s36")
    a("s_lshl_b32 s25, s25, 13")
    a("s_mul_i32 s26, s24, %d" % (2 * WBLK))
    a("s_lshl_b32 s37, s37, 3")
    a("s_add_u32 s26, s26, s37")
    a("s_mul_i32 s27, s24, %d" % (4 * KBLK))
    a("s_mul_i32 s28, s24, %d" % (4 * VBLK))
    a("s_lshl_b32 s29, s24, 12")
    a("s_and_b32 s33, s24, 1")
    a("s_lshl_b32 s33, s33, 10")
    a("s_lshr_b32 s36, s24, 1")
    a("s_lshl_b32 s36, s36, 13")
    a("s_add_u32 s33, s33, s36")
    a("s_mul_i32 s30, s24, %d" % (2 * 16 * 1280))
    a("s_add_u32 s31, s30, %d" % (16 * 1280))
    a("s_add_u32 s32, s30, %d" % (32 * 1280))
    a("s_lshl_b32 s37, s24, 18")
    a("s_waitcnt lgkmcnt(0)")
    a("s_cmp_eq_u32 s60, 0")
    a("s_cselect_b32 s4, s40, s48")
    a("s_cselect_b32 s5, s41, s49")
    a("s_cselect_b32 s12, s42, s50")
    a("s_cselect_b32 s13, s43, s51")
    a("s_cselect_b32 s16, s44, s52")
    a("s_cselect_b32 s17, s45, s53")
    a("s_cselect_b32 s8, s46, s54")
    a("s_cselect_b32 s9, s47, s55")
    a("s_mul_i32 s36, s62, %d" % (144 * 1280))
    a("s_add_u32 s4, s4, s36")
    a("s_addc_u32 s5, s5, 0")
    a("s_mov_b32 s6, %d" % (144 * 1280))
    a("s_mov_b32 s7, 0x20000")
    a("s_lshl_b32 s36, s61, 8")
    a("s_add_u32 s8, s8, s36")
    a("s_addc_u32 s9, s9, 0")
    a("s_sub_u32 s10, %d, s36" % (640 * 8192))
    a("s_mov_b32 s11, 0x20000")
    a("s_lshl_b32 s36, s62, 5")
    a("s_add_u32 s36, s36, s61")
    a("s_lshl_b32 s36, s36, 17")
    a("s_add_u32 s12, s12, s36")
    a("s_addc_u32 s13, s13, 0")
    a("s_mov_b32 s14, 131072")
    a("s_mov_b32 s15, 0x20000")
    a("s_add_u32 s16, s16, s36")
    a("s_addc_u32 s17, s17, 0")
    a("s_mov_b32 s18, 131072")
    a("s_mov_b32 s19, 0x20000")
    a("s_mul_i32 s36, s60, %d" % OS_BLK)
    a("s_mul_i32 s38, s62, %d" % (9 * QT_BYTES))
    a("s_add_u32 s36, s36, s38")
    a("s_lshl_b32 s38, s61, 12")
    a("s_add_u32 s36, s36, s38")
    a("s_add_u32 s20, s56, s36")
    a("s_addc_u32 s21, s57, 0")
    a("s_sub_u32 s22, %d, s38" % (9 * QT_BYTES))
    a("s_mov_b32 s23, 0x20000")
    a("s_cmp_eq_u32 s24, 3")
    a("s_cbranch_scc1 K1_w3")
    gen_wave(a, 2, opt)
    a.label("K1_w3")
    gen_wave(a, 3, opt)
    a.label("K1_end")
    a("s_endpgm")
    a(kernel_desc(name, 256, 96, 256))
    return LDS_TOTAL

if __name__ == "__main__":
    import sys
    from gen_k2 import gen_k2
    a = Asm()
    a(header([("k1_kernel", (512,1,1), (256,1,1), LDS_TOTAL), ("k2_kernel", (240,1,1), (256,1,1), 98304)]))
    import json
    opt = json.loads(sys.argv[2]) if len(sys.argv) > 2 else {}
    gen_k1(a, "k1_kernel", opt)
    gen_k2(a, "k2_kernel", NB=4, rot=1, P=8, stamps=bool(opt.get("stamps")), ld_w=opt.get("k2w", ""), ld_o=opt.get("k2o", ""))
    open(sys.argv[1], "w").write(a.text())
```
